```python
import torch

def _softmax(x, axis=-1):
    return torch.softmax(x, dim=axis)
def _gelu(x):
    return torch.nn.functional.gelu(x, approximate="tanh")
def _silu(x):
    return torch.nn.functional.silu(x)
def _sigmoid(x):
    return torch.sigmoid(x)
def _layernorm(x, axis=-1, eps=1e-5):
    m = x.mean(dim=axis, keepdim=True)
    v = x.var(dim=axis, keepdim=True, unbiased=False)
    return (x - m) / torch.sqrt(v + eps)
def _scatter_add(tgt, idx, src, axis=0):
    return tgt.clone().index_add_(axis, idx, src)
def _segment_sum(src, seg, n):
    out = torch.zeros((n,) + src.shape[1:], dtype=src.dtype)
    return out.index_add_(0, seg, src)
def _pad(x, pw):
    flat = tuple(v for pair in reversed(pw) for v in pair)
    return torch.nn.functional.pad(x, flat)

kernel_name = 'parallel_sum__linear_kernel_hedgehog__mixer_token_mlp__prompt'

def setup_inputs():

    _w = (lambda a: (lambda t: t.to(torch.bfloat16) if t.is_floating_point() else t)(torch.as_tensor(a)))
    def _A_setup():
        B, S, D, H = 1, 2048, 448, 16
        Dh = D // H
        return {
            "x": _w((lambda *s: torch.randn(*s, dtype=torch.bfloat16) * 0.05)(B, S, D)),
            "wqkv": _w((lambda *s: torch.randn(*s, dtype=torch.bfloat16) * 0.2)(D, 3 * D)),
            "w_phi": _w((lambda *s: torch.randn(*s, dtype=torch.bfloat16) * 0.2)(H, Dh, Dh) * (Dh ** -0.5)),
            "wo": _w((lambda *s: torch.randn(*s, dtype=torch.bfloat16) * 0.05)(D, D)),
        }
    _A_in = _A_setup()

    def _B_setup():
        B, S, D, F = 1, 2048, 448, 1792
        return {
            "x": _w((lambda *s: torch.randn(*s, dtype=torch.bfloat16) * 0.05)(B, S, D)),
            "w1": _w((lambda *s: torch.randn(*s, dtype=torch.bfloat16) * 0.8)(S, F) * (S ** -0.5)),
            "b1": _w((lambda *s: torch.randn(*s, dtype=torch.bfloat16) * 3.2)(F) * 0.02),
            "w2": _w((lambda *s: torch.randn(*s, dtype=torch.bfloat16) * 0.4)(F, S) * (F ** -0.5)),
            "b2": _w((lambda *s: torch.randn(*s, dtype=torch.bfloat16) * 1.6)(S) * 0.02),
        }
    _B_in = _B_setup()

    return {
        "A_x": _A_in["x"],
        "A_wqkv": _A_in["wqkv"],
        "A_w_phi": _A_in["w_phi"],
        "A_wo": _A_in["wo"],
        "B_x": _B_in["x"],
        "B_w1": _B_in["w1"],
        "B_b1": _B_in["b1"],
        "B_w2": _B_in["w2"],
        "B_b2": _B_in["b2"],
    }

def reference(A_x, A_wqkv, A_w_phi, A_wo, B_x, B_w1, B_b1, B_w2, B_b2):
    def _A_ref(x, wqkv, w_phi, wo):
        B, S, D = x.shape
        H = 16; Dh = D // H
        qkv = (lambda x, *d: x.permute(*d))((x @ wqkv).reshape(B, S, 3, H, Dh), 2, 0, 3, 1, 4)
        q, k, v = qkv[0], qkv[1], qkv[2]
        pq = torch.einsum("bhsd,hdf->bhsf", q, w_phi)
        pk = torch.einsum("bhsd,hdf->bhsf", k, w_phi)
        phi_q = torch.concatenate([_softmax(pq, axis=-1), _softmax(-pq, axis=-1)], axis=-1)
        phi_k = torch.concatenate([_softmax(pk, axis=-1), _softmax(-pk, axis=-1)], axis=-1)
        kv = torch.einsum("bhsf,bhsd->bhfd", phi_k, v)
        z  = torch.einsum("bhsf->bhf", phi_k)
        num = torch.einsum("bhqf,bhfd->bhqd", phi_q, kv)
        den = torch.einsum("bhqf,bhf->bhq", phi_q, z)[..., None] + 1e-6
        o = num / den
        return (lambda x, *d: x.permute(*d))(o, 0, 2, 1, 3).reshape(B, S, D) @ wo

    def _B_ref(x, w1, b1, w2, b2):
        B, S, D = x.shape
        h = _layernorm(x, axis=-1)
        u = torch.einsum("bsd,sf->bdf", h, w1) + b1
        u = _gelu(u)
        y = torch.einsum("bdf,fs->bds", u, w2) + b2
        return (lambda x, *d: x.permute(*d))(y, 0, 2, 1)

    x = A_x
    xn = _layernorm(x, axis=-1)
    return x + _A_ref(xn, A_wqkv, A_w_phi, A_wo) + _B_ref(xn, B_w1, B_b1, B_w2, B_b2)
```

```python
NAME = "parallel_sum__linear_kernel_hedgehog__mixer_token_mlp__prompt"

class Asm:
    def __init__(self):
        self.L = []
        self.nlab = 0
    def __call__(self, s):
        for ln in s.split("\n"):
            ln = ln.strip()
            if ln:
                self.L.append("    " + ln)
    def label(self, name):
        self.L.append(name + ":")
    def newlabel(self, base="L"):
        self.nlab += 1
        return "%s_%d" % (base, self.nlab)
    def c(self, s):
        self.L.append("    ; " + s)
    def text(self):
        return "\n".join(self.L) + "\n"

def vr(b, n=1, p="v"):
    return "%s%d" % (p, b) if n == 1 else "%s[%d:%d]" % (p, b, b + n - 1)
def ar(b, n=1): return vr(b, n, "a")
def sr(b, n=1): return vr(b, n, "s")

def kd(name, nvgpr, accum, nsgpr=102):
    return """.p2align 6
.amdhsa_kernel %s
  .amdhsa_next_free_vgpr %d
  .amdhsa_next_free_sgpr %d
  .amdhsa_accum_offset %d
  .amdhsa_group_segment_fixed_size 0
  .amdhsa_kernarg_size 96
  .amdhsa_user_sgpr_count 2
  .amdhsa_user_sgpr_kernarg_segment_ptr 1
  .amdhsa_system_sgpr_workgroup_id_x 1
  .amdhsa_float_denorm_mode_32 3
.end_amdhsa_kernel
""" % (name, nvgpr, nsgpr, accum)

def single(body, grid, block, lds, nvgpr, accum, nsgpr=102, header=""):
    k = NAME + "_kernel"
    s = header
    s += "; @launch grid=(%d,1,1) block=(%d,1,1) lds=%d\n" % (grid, block, lds)
    s += '.amdgcn_target "amdgcn-amd-amdhsa--gfx950"\n.text\n.globl %s\n.p2align 8\n.type %s,@function\n%s:\n' % (k, k, k)
    s += body
    s += '.section .rodata,"a"\n' + kd(k, nvgpr, accum, nsgpr)
    return s
```

```python
import re

_reg = re.compile(r"(-|\|)?\b([vas])(?:(\d+)|\[(\d+):(\d+)\])")
TRANS = ("v_exp_f32", "v_log_f32", "v_rcp_f32", "v_rsq_f32", "v_sqrt_f32", "v_sin_f32", "v_cos_f32", "v_rcp_iflag_f32")

def regs_of(op):
    op = op.strip()
    out = set()
    if op in ("vcc", "vcc_lo", "vcc_hi"):
        return {("s", "vcc")}
    if op in ("exec", "exec_lo", "exec_hi"):
        return {("s", "exec")}
    if op == "m0":
        return {("s", "m0")}
    m = re.match(r"^(?:-|abs\(|-abs\(|\|)*([vas])(?:(\d+)|\[(\d+):(\d+)\])", op)
    if m:
        k = m.group(1)
        if m.group(2) is not None:
            out.add((k, int(m.group(2))))
        else:
            for i in range(int(m.group(3)), int(m.group(4)) + 1):
                out.add((k, i))
    return out

class Ins:
    def __init__(self, line):
        self.line = line
        t = line.split(";")[0].strip()
        self.mn = t.split()[0] if t else ""
        rest = t[len(self.mn):].strip()
        ops, cur, depth = [], "", 0
        for ch in rest:
            if ch in "[(": depth += 1
            if ch in "])": depth -= 1
            if ch == "," and depth == 0:
                ops.append(cur.strip()); cur = ""
            else:
                cur += ch
        if cur.strip(): ops.append(cur.strip())
        self.mods = ""
        if ops:
            parts = ops[-1].split(None, 1)
            if len(parts) == 2 and not parts[0].endswith("("):
                ops[-1] = parts[0]; self.mods = parts[1]
        self.ops = ops
        mn = self.mn
        self.mfma = mn.startswith("v_mfma")
        self.valu = mn.startswith("v_") and not self.mfma
        self.salu = mn.startswith("s_")
        self.vmem = mn.startswith(("buffer_", "global_", "flat_"))
        self.ds = mn.startswith("ds_")
        self.trans = any(mn.startswith(x) for x in TRANS)
        self.dpp = "_dpp" in mn or "row_" in self.mods or "quad_perm" in self.mods
        self.perml = mn.startswith("v_permlane")
        self.rdlane = mn.startswith(("v_readlane", "v_readfirstlane", "v_writelane"))
        self.sdwa = "_sdwa" in mn
        R = [regs_of(o) for o in ops]
        self.w = set(); self.r = set(); self.srcC = set(); self.sdata = set()
        if self.mfma:
            self.w = R[0]; self.r = R[1] | R[2] | R[3]; self.srcC = R[3]; self.srcAB = R[1] | R[2]
            self.passes = 8 if "32x32x16" in mn else 4
        elif self.valu:
            if self.perml and "swap" in mn:
                self.w = R[0] | R[1]; self.r = R[0] | R[1]
            elif mn.startswith(("v_add_co", "v_sub_co", "v_addc_co", "v_subb_co", "v_div_scale")):
                self.w = R[0] | R[1]; self.r = set().union(*R[2:])
            else:
                self.w = R[0] if R else set()
                self.r = set().union(*R[1:]) if len(R) > 1 else set()
                if mn.startswith(("v_fmac", "v_dot2c", "v_writelane")) or self.dpp or self.sdwa: self.r |= R[0]
                if mn.startswith("v_cmpx"): self.w |= {("s", "exec")}
                if mn.startswith("v_cndmask") and len(ops) == 3: self.r |= {("s", "vcc")}
        elif self.vmem:
            lds = " lds" in (" " + self.mods)
            if mn in ("buffer_inv", "buffer_wbl2"):
                pass
            elif "load" in mn and not lds:
                self.w = R[0]; self.r = set().union(*R[1:])
                if "d16" in mn: self.r |= R[0]
            else:
                self.r = set().union(*R) if R else set()
                if lds: self.r |= {("s", "m0")}
                if "store" in mn and ("x3" in mn or "x4" in mn):
                    self.sdata = R[0] if mn.startswith("buffer") else R[1]
            self.ldsdma = lds
        elif self.ds:
            if "read" in mn or "swizzle" in mn or "permute" in mn:
                self.w = R[0]; self.r = set().union(*R[1:]) if len(R) > 1 else set()
            else:
                self.r = set().union(*R) if R else set()
        elif self.salu:
            if mn.startswith(("s_cmp", "s_cbranch", "s_branch", "s_waitcnt", "s_nop", "s_barrier", "s_sleep", "s_endpgm", "s_setprio")):
                self.r = set().union(*R) if R else set()
            else:
                self.w = R[0] if R else set()
                self.r = set().union(*R[1:]) if len(R) > 1 else set()
                if "saveexec" in mn: self.w |= {("s", "exec")}
        self.states = 1
        if mn == "s_nop": self.states = int(ops[0], 0) + 1

def isv(s): return {x for x in s if x[0] in "va"}
def iss(s): return {x for x in s if x[0] == "s"}

def need(p, c):
    n = 0
    if p.valu:
        pv = isv(p.w); ps = iss(p.w)
        if c.mfma and pv & c.r: n = max(n, 2)
        if c.valu and c.dpp and pv & c.r: n = max(n, 2)
        if c.perml and pv & c.r: n = max(n, 2)
        if c.rdlane and pv & c.r: n = max(n, 1)
        if p.trans and c.valu and not c.trans and pv & c.r: n = max(n, 1)
        if p.trans and (c.vmem or c.ds or c.mfma) and pv & c.r: n = max(n, 2)
        if p.sdwa and c.valu and pv & (c.r | c.w): n = max(n, 1)
        if ps:
            if c.vmem and ps & c.r: n = max(n, 5)
            if c.valu and ps & c.r: n = max(n, 4 if c.rdlane else 2)
            if c.salu and ps & c.r: n = max(n, 1)
            if ("s", "exec") in ps:
                if c.mfma or c.perml or c.rdlane: n = max(n, 4)
                if c.dpp: n = max(n, 5)
    if p.salu and ("s", "m0") in p.w and c.vmem and getattr(c, "ldsdma", False): n = max(n, 1)
    if p.sdata and (c.valu or c.mfma) and p.sdata & c.w: n = max(n, 2)
    elif p.sdata and p.sdata & c.w: n = max(n, 1)
    if p.mfma:
        big = {4: 8, 8: 12}[p.passes]
        if c.mfma:
            if p.w & c.srcAB: n = max(n, big)
            if p.w & c.srcC:
                if not (p.w == c.srcC and p.passes == c.passes): n = max(n, big - 2)
            elif p.w & c.w: n = max(n, big)
        elif (c.valu or c.vmem or c.ds) and p.w & (c.r | c.w): n = max(n, big)
        if c.valu and p.srcC & c.w: n = max(n, {4: 3, 8: 7}[p.passes])
    return n

def pad(text):
    out = []
    hists = [[]]
    snaps = {}
    added = 0
    for line in text.split("\n"):
        t = line.split(";")[0].strip()
        if t.endswith(":"):
            for h in snaps.get(t[:-1], []): hists.append(list(h))
            out.append(line)
            continue
        if not t or t.startswith("."):
            out.append(line)
            continue
        c = Ins(line)
        req = 0
        for hist in hists:
            dist = 0
            for p in reversed(hist):
                nd = need(p, c)
                if nd - dist > req: req = nd - dist
                dist += p.states
                if dist > 20: break
        if req > 0:
            nop = Ins("    s_nop %d" % (req - 1))
            out.append(nop.line + "    ; hz"); added += 1
            for hist in hists: hist.append(nop)
        out.append(line)
        for hist in hists: hist.append(c)
        nh = []
        for hist in hists:
            hist = hist[-24:]
            if not any(len(o) == len(hist) and all(a is b for a, b in zip(o, hist)) for o in nh): nh.append(hist)
        hists = nh
        if c.mn.startswith(("s_cbranch", "s_branch")):
            snaps.setdefault(c.ops[0], []).extend(list(h) for h in hists)
            if c.mn == "s_branch": hists = [[]]
    return "\n".join(out), added
```

```python
import sys
from asmlib import *
from hazard import pad

opt = dict(stamp=0, nt=1, pf=1, spin=200000)
for a in sys.argv[1:]:
    k, v = a.split("="); opt[k] = int(v)

F0, F1, F2, F3, EPOCH = 0x0, 0x1000, 0x2000, 0x3000, 0x4000
KV, XNF, HF, WF, UF, OF = 0x10000, 0x100000, 0x300000, 0x500000, 0x700000, 0x900000
STAMP = 0x4000000
PREP = 131072; PST = 912
PHK = 90112; VFL = 106496
RED1 = 114688
LDS_TOTAL = 163840
sX, sWQ, sWP, sWO, sW1, sB1, sW2, sB2, sOUT, sWS = [sr(8 + 4 * i, 4) for i in range(10)]
sW, sXCD, sSLOT, sNON, sFT, sDT1, sG1, sHH, sC, sST, sDT2, sFIN = ["s%d" % i for i in range(48, 60)]
sT = ["s%d" % i for i in range(60, 70)]
sGM = "s[70:71]"
sRB = "s72"
sSO = "s73"
sSP = "s74"
sE = "s[76:77]"
NT = " nt" if opt["nt"] else ""

A = Asm()
nstamp = [0]
def stamp():
    if opt["stamp"]:
        i = nstamp[0]; nstamp[0] += 1
        assert i < 11
        A("s_memtime s[%d:%d]" % (80 + 2 * i, 81 + 2 * i))

class VM:
    def __init__(self): self.q = []
    def op(self, text, tag=None):
        A(text); self.q.append(tag)
    def wait(self, tag):
        idx = max(i for i, t in enumerate(self.q) if t == tag)
        n = len(self.q) - 1 - idx
        assert n <= 63
        A("s_waitcnt vmcnt(%d)" % n)
        self.q = self.q[idx + 1:]
    def has(self, tag): return tag in self.q
    def drain(self):
        A("s_waitcnt vmcnt(0)"); self.q = []
vm = VM()

def allred32(v, tmp, op="add"):
    for sh in (8, 4, 2, 1):
        A("v_%s_f32_dpp %s, %s, %s row_ror:%d row_mask:0xf bank_mask:0xf" % (op, v, v, v, sh))
    A("v_mov_b32 %s, %s" % (tmp, v))
    A("v_permlane16_swap_b32 %s, %s" % (v, tmp))
    A("v_%s_f32 %s, %s, %s" % (op, v, v, tmp))

def xhalf(v, tmp, op):
    A("v_mov_b32 %s, %s" % (tmp, v))
    A("v_permlane32_swap_b32 %s, %s" % (v, tmp))
    A("v_%s_f32 %s, %s, %s" % (op, v, v, tmp))

def rbf(dst, src):
    A("v_cvt_pk_bf16_f32 %s, %s, %s" % (dst, src, src))
    A("v_and_b32 %s, 0xffff0000, %s" % (dst, dst))

def poll(voff, soff, width=1, tmp=250):
    L = A.newlabel("L_poll"); Ld = A.newlabel("L_pdone")
    A("s_mov_b32 %s, %d" % (sSP, opt["spin"]))
    A.label(L)
    if width == 1:
        A("buffer_load_dword v%d, %s, %s, %s offen sc1" % (tmp, voff, sWS, soff))
        A("s_waitcnt vmcnt(0)")
        A("v_cmp_ne_u32 vcc, %s, v%d" % (sNON, tmp))
    else:
        A("buffer_load_dwordx4 %s, %s, %s, %s offen sc1" % (vr(tmp, 4), voff, sWS, soff))
        A("s_waitcnt vmcnt(0)")
        A("v_xor_b32 v%d, %s, v%d" % (tmp, sNON, tmp))
        A("v_xor_b32 v%d, %s, v%d" % (tmp + 1, sNON, tmp + 1))
        A("v_xor_b32 v%d, %s, v%d" % (tmp + 2, sNON, tmp + 2))
        A("v_xor_b32 v%d, %s, v%d" % (tmp + 3, sNON, tmp + 3))
        A("v_or3_b32 v%d, v%d, v%d, v%d" % (tmp, tmp, tmp + 1, tmp + 2))
        A("v_or_b32 v%d, v%d, v%d" % (tmp, tmp, tmp + 3))
        A("v_cmp_ne_u32 vcc, 0, v%d" % tmp)
    A("s_nop 1")
    A("s_cmp_eq_u64 vcc, 0")
    A("s_cbranch_scc1 %s" % Ld)
    A("s_sleep 1")
    A("s_sub_u32 %s, %s, 1" % (sSP, sSP))
    A("s_cmp_lg_u32 %s, 0" % sSP)
    A("s_cbranch_scc1 %s" % L)
    A.label(Ld)
    vm.q = []

def flag_store(soff, tmp=249, track=True):
    A("v_mov_b32 v%d, %s" % (tmp, sNON))
    A("v_mov_b32 v%d, 0" % (tmp - 1))
    A("s_mov_b64 exec, 1")
    vm.op("buffer_store_dword v%d, v%d, %s, %s offen sc1" % (tmp, tmp - 1, sWS, soff), "flag")
    A("s_mov_b64 exec, -1")

A("s_cmp_ge_u32 s2, 256")
A("s_cbranch_scc1 L_end")
for reg, off in ((44, 88), (8, 0), (12, 8), (16, 16), (24, 40), (20, 24), (28, 48), (32, 56), (36, 64), (40, 72)):
    A("s_load_dwordx2 s[%d:%d], s[0:1], %d" % (reg, reg + 1, off))
if opt["stamp"]:
    A("s_memrealtime s[78:79]")
stamp()
A("v_lshrrev_b32 v1, 6, v0")
A("v_and_b32 v0, 63, v0")
A("v_readfirstlane_b32 %s, v1" % sW)
A("v_lshlrev_b32 v1, 4, v0")
sizes = [2048 * 896, 448 * 2688, 16 * 1568, 448 * 896, 2048 * 3584, 3584, 1792 * 4096, 4096, 2048 * 896, 0x10000000]
for i, sz in enumerate(sizes):
    A("s_mov_b32 s%d, %d" % (10 + 4 * i, sz))
    A("s_mov_b32 s%d, 0x20000" % (11 + 4 * i))
A("s_and_b32 %s, s2, 7" % sXCD)
A("s_lshr_b32 %s, s2, 3" % sSLOT)
A("s_and_b32 %s, %s, 1" % (sT[0], sXCD))
A("s_sub_u32 %s, 25, %s" % (sT[1], sT[0]))
A("s_cmp_lt_u32 %s, %s" % (sSLOT, sT[1]))
A("s_cselect_b32 %s, 1, 0" % sG1)
A("s_mul_i32 %s, %s, 25" % (sT[0], sT[0]))
A("s_lshr_b32 %s, %s, 1" % (sT[1], sXCD))
A("s_mul_i32 %s, %s, 49" % (sT[1], sT[1]))
A("s_add_u32 %s, %s, %s" % (sT[0], sT[0], sT[1]))
A("s_add_u32 %s, %s, %s" % (sT[0], sT[0], sSLOT))
A("s_mul_i32 %s, %s, 9363" % (sFT, sT[0]))
A("s_lshr_b32 %s, %s, 16" % (sFT, sFT))
A("s_mul_i32 %s, %s, 7" % (sT[1], sFT))
A("s_sub_u32 %s, %s, %s" % (sDT1, sT[0], sT[1]))
A("s_and_b32 %s, %s, 1" % (sT[0], sXCD))
A("s_lshl_b32 %s, %s, 3" % (sT[0], sT[0]))
A("s_and_b32 %s, %s, 7" % (sT[1], sSLOT))
A("s_add_u32 %s, %s, %s" % (sHH, sT[0], sT[1]))
A("s_lshr_b32 %s, %s, 1" % (sT[0], sXCD))
A("s_lshl_b32 %s, %s, 2" % (sT[0], sT[0]))
A("s_lshr_b32 %s, %s, 3" % (sT[1], sSLOT))
A("s_add_u32 %s, %s, %s" % (sC, sT[0], sT[1]))
A("s_cmp_lt_u32 %s, 28" % sSLOT)
A("s_cselect_b32 %s, 1, 0" % sFIN)
A("s_mul_i32 %s, %s, 37" % (sT[0], sSLOT))
A("s_lshr_b32 %s, %s, 8" % (sT[0], sT[0]))
A("s_mul_i32 %s, %s, 7" % (sT[1], sT[0]))
A("s_sub_u32 %s, %s, %s" % (sDT2, sSLOT, sT[1]))
A("s_lshl_b32 %s, %s, 2" % (sST, sXCD))
A("s_add_u32 %s, %s, %s" % (sST, sST, sT[0]))
A("s_mov_b32 s70, 0")
A("s_mov_b32 s71, -1")
A("s_mul_i32 %s, s2, 4682" % sT[2])
A("s_lshr_b32 %s, %s, 16" % (sT[2], sT[2]))
A("s_mul_i32 %s, %s, 14" % (sT[3], sT[2]))
A("s_sub_u32 %s, s2, %s" % (sT[3], sT[3]))
A("v_lshrrev_b32 v8, 5, v0")
A("v_and_b32 v9, 31, v0")
A("v_mul_u32_u24 v10, 896, v8")
A("v_lshl_add_u32 v10, v9, 4, v10")
A("v_cmp_gt_u32 vcc, 28, v9")
A("v_mov_b32 v11, 0x80000000")
A("v_cndmask_b32 v10, v11, v10, vcc")
A("v_cndmask_b32 v15, 0, 1.0, vcc")
A("v_and_b32 v12, 0x13, v9")
A("v_and_b32 v13, 4, v9")
A("v_lshl_or_b32 v12, v13, 1, v12")
A("v_and_b32 v13, 8, v9")
A("v_lshrrev_b32 v13, 1, v13")
A("v_or_b32 v12, v12, v13")
A("v_mul_u32_u24 v12, 2688, v12")
A("v_lshl_add_u32 v12, v8, 4, v12")
A("v_mul_u32_u24 v13, 448, v8")
A("v_lshl_add_u32 v13, v9, 1, v13")
A("v_cndmask_b32 v13, v11, v13, vcc")
A("v_cndmask_b32 v14, v13, v11, %s" % sGM)
A("s_waitcnt lgkmcnt(0)")
A("s_load_dword %s, s[44:45], %d" % (sNON, EPOCH))

UA, UB, UP = 140, 148, 164
A("s_cmp_lt_u32 s2, 224")
A("s_cselect_b32 %s, 3, 0" % sT[4])
A("s_cmp_lt_u32 %s, %s" % (sW, sT[4]))
A("s_cselect_b32 %s, 1, 0" % sT[4])
A("s_cbranch_scc0 L_nounit0")
A("s_mul_i32 %s, %s, %d" % (sT[5], sT[3], 32 * 2688))
A("s_mul_i32 %s, %s, 896" % (sT[6], sW))
A("s_add_u32 %s, %s, %s" % (sT[5], sT[5], sT[6]))
A("s_mul_i32 %s, %s, 56" % (sT[6], sT[2]))
A("s_add_u32 %s, %s, %s" % (sT[5], sT[5], sT[6]))
A("buffer_load_dwordx4 %s, v12, %s, %s offen%s" % (vr(UA, 4), sWQ, sT[5], NT))
A("buffer_load_dwordx4 %s, v12, %s, %s offen offset:32%s" % (vr(UA + 4, 4), sWQ, sT[5], NT))
A("s_cmp_eq_u32 %s, 2" % sW)
A("s_cbranch_scc1 L_nounit0")
A("s_mul_i32 %s, %s, 1568" % (sT[5], sT[2]))
for ks in range(2):
    for e in range(8):
        va = "v14" if (ks == 1 and e >= 4) else "v13"
        A("buffer_load_ushort v%d, %s, %s, %s offen offset:%d" % (UB + ks * 8 + e, va, sWP, sT[5], (16 * ks + e) * 56))
A.label("L_nounit0")
XR, XF, XD = 96, 104, 120
A("s_lshl_b32 %s, s2, 3" % sT[5])
A("s_lshl_b32 %s, %s, 1" % (sT[6], sW))
A("s_add_u32 %s, %s, %s" % (sT[5], sT[5], sT[6]))
A("s_mul_i32 %s, %s, 896" % (sT[5], sT[5]))
A("buffer_load_dwordx4 %s, v10, %s, %s offen" % (vr(XR, 4), sX, sT[5]))
A("buffer_load_dwordx4 %s, v10, %s, %s offen offset:448" % (vr(XR + 4, 4), sX, sT[5]))

def dma_src_setup(stride):
    A("v_lshrrev_b32 v2, 3, v0")
    A("v_and_b32 v3, 7, v0")
    A("v_lshrrev_b32 v6, 2, v0")
    A("v_and_b32 v6, 4, v6")
    A("v_xor_b32 v3, v3, v6")
    A("v_mul_u32_u24 v2, %d, v2" % stride)
    A("v_lshl_add_u32 v2, v3, 4, v2")
    A("v_add_u32 v3, %d, v2" % (8 * stride - 1024))
def tr_setup(gshift):
    A("v_lshrrev_b32 v4, 5, v0")
    A("v_lshlrev_b32 v4, %d, v4" % gshift)
    A("v_bfe_u32 v5, v0, 2, 2")
    A("v_lshl_add_u32 v4, v5, 7, v4")
    A("v_lshrrev_b32 v5, 1, v5")
    A("v_lshl_add_u32 v4, v5, 6, v4")
    A("v_bfe_u32 v5, v0, 4, 1")
    A("v_lshl_add_u32 v4, v5, 5, v4")
    A("v_and_b32 v5, 3, v0")
    A("v_lshl_add_u32 v4, v5, 3, v4")
    A("v_add_u32 v4, %s, v4" % sRB)
def dma2(srd, slot, soff_imm, tag, flags=""):
    A("s_add_u32 m0, %s, %d" % (sRB, slot * 2048))
    A("s_add_u32 %s, %s, %d" % (sT[9], sSO, soff_imm))
    vm.op("buffer_load_dwordx4 v2, %s, %s offen%s lds" % (srd, sT[9], flags), tag)
    vm.op("buffer_load_dwordx4 v3, %s, %s offen offset:1024%s lds" % (srd, sT[9], flags), tag)

dma_src_setup(3584)
A("s_lshl_b32 %s, %s, 15" % (sRB, sW))
tr_setup(10)
A("s_lshr_b32 %s, %s, 1" % (sT[5], sW))
A("s_lshl_b32 %s, %s, 6" % (sT[5], sT[5]))
A("v_xor_b32 v4, %s, v4" % sT[5])
A("v_xor_b32 v5, 64, v4")
A("s_mul_i32 %s, %s, %d" % (sSO, sW, 512 * 3584))
A("s_lshl_b32 %s, %s, 7" % (sT[5], sFT))
A("s_add_u32 %s, %s, %s" % (sSO, sSO, sT[5]))
A("s_cmp_eq_u32 %s, 0" % sG1)
A("s_cbranch_scc1 L_now1a")
for i in range(16):
    dma2(sW1, i, i * 16 * 3584, ("w1", i), NT)
A("s_waitcnt vmcnt(32)")
A("s_branch L_ln")
A.label("L_now1a")
A("s_waitcnt vmcnt(0)")
A.label("L_ln")
stamp()
def unpack(dst, src, n):
    for i in range(n):
        A("v_lshlrev_b32 v%d, 16, v%d" % (dst + 2 * i, src + i))
        A("v_and_b32 v%d, 0xffff0000, v%d" % (dst + 2 * i + 1, src + i))
def P(r): return vr(r, 2)
def pksum(dst, src, t):
    for i in range(4):
        A("v_pk_add_f32 %s, %s, %s" % (P(t + 2 * i), P(src + 4 * i), P(src + 4 * i + 2)))
    A("v_pk_add_f32 %s, %s, %s" % (P(t), P(t), P(t + 2)))
    A("v_pk_add_f32 %s, %s, %s" % (P(t + 4), P(t + 4), P(t + 6)))
    A("v_pk_add_f32 %s, %s, %s" % (P(t), P(t), P(t + 4)))
    A("v_add_f32 v%d, v%d, v%d" % (dst, t, t + 1))
def pksq(dst, src, t):
    A("v_pk_mul_f32 %s, %s, %s" % (P(t), P(src), P(src)))
    A("v_pk_mul_f32 %s, %s, %s" % (P(t + 2), P(src + 2), P(src + 2)))
    for i in range(2, 8):
        A("v_pk_fma_f32 %s, %s, %s, %s" % (P(t + 2 * (i & 1)), P(src + 2 * i), P(src + 2 * i), P(t + 2 * (i & 1))))
    A("v_pk_add_f32 %s, %s, %s" % (P(t), P(t), P(t + 2)))
    A("v_add_f32 v%d, v%d, v%d" % (dst, t, t + 1))
def pksub_s(dst, src, s, n=8):
    for i in range(n):
        A("v_pk_add_f32 %s, %s, %s op_sel_hi:[1,0] neg_lo:[0,1] neg_hi:[0,1]" % (P(dst + 2 * i), P(src + 2 * i), P(s)))
def pkmul_s(dst, src, s, n=8):
    for i in range(n):
        A("v_pk_mul_f32 %s, %s, %s op_sel_hi:[1,0]" % (P(dst + 2 * i), P(src + 2 * i), P(s)))
def pack(dst, src, n):
    for i in range(n):
        A("v_cvt_pk_bf16_f32 v%d, v%d, v%d" % (dst + i, src + 2 * i, src + 2 * i + 1))
INV448 = "0x3b124925"
EPS5 = "0x3727c5ac"
T0 = 176
def ln_finish(mean, var, src, outp):
    rbf("v%d" % mean, "v%d" % mean)
    rbf("v%d" % var, "v%d" % var)
    A("v_add_f32 v%d, %s, v%d" % (var, EPS5, var))
    rbf("v%d" % var, "v%d" % var)
    A("v_sqrt_f32 v%d, v%d" % (var, var))
    pksub_s(XD, src, mean)
    rbf("v%d" % var, "v%d" % var)
    A("v_rcp_f32 v%d, v%d" % (var, var))
    pack(outp, XD, 8)
    unpack(XD, outp, 8)
    pkmul_s(XD, XD, var)
    pack(outp, XD, 8)
M1, V1 = 192, 194
unpack(XF, XR, 8)
pksum(M1, XF, T0)
allred32("v%d" % M1, "v%d" % (T0 + 8))
A("v_mul_f32 v%d, %s, v%d" % (M1, INV448, M1))
pksub_s(XD, XF, M1)
pksq(V1, XD, T0)
A("v_mul_f32 v%d, v15, v%d" % (V1, V1))
allred32("v%d" % V1, "v%d" % (T0 + 8))
A("v_mul_f32 v%d, %s, v%d" % (V1, INV448, V1))
ln_finish(M1, V1, XF, XR)
A("s_mul_i32 %s, %s, %d" % (sT[5], sW, 2 * PST))
A("s_add_u32 %s, %s, %d" % (sT[5], sT[5], PREP))
A("v_mul_u32_u24 v10, %d, v8" % PST)
A("v_lshl_add_u32 v10, v9, 4, v10")
A("v_add_u32 v10, %s, v10" % sT[5])
A("s_mov_b32 s76, 0x0fffffff")
A("s_mov_b32 s77, 0x0fffffff")
A("s_mov_b64 exec, %s" % sE)
A("ds_write_b128 v10, %s" % vr(XR, 4))
A("ds_write_b128 v10, %s offset:448" % vr(XR + 4, 4))
A("s_mov_b64 exec, -1")
unpack(XF, XR, 8)
pksum(M1, XF, T0)
pksq(V1, XF, T0 + 8)
A("v_mul_f32 v%d, v15, v%d" % (M1, M1))
A("v_mul_f32 v%d, v15, v%d" % (V1, V1))
for sh in (8, 4, 2, 1):
    A("v_add_f32_dpp v%d, v%d, v%d row_ror:%d row_mask:0xf bank_mask:0xf" % (M1, M1, M1, sh))
    A("v_add_f32_dpp v%d, v%d, v%d row_ror:%d row_mask:0xf bank_mask:0xf" % (V1, V1, V1, sh))
A("v_mov_b32 v%d, v%d" % (T0, M1))
A("v_mov_b32 v%d, v%d" % (T0 + 1, V1))
A("v_permlane16_swap_b32 v%d, v%d" % (M1, T0))
A("v_permlane16_swap_b32 v%d, v%d" % (V1, T0 + 1))
A("v_add_f32 v%d, v%d, v%d" % (M1, M1, T0))
A("v_add_f32 v%d, v%d, v%d" % (V1, V1, T0 + 1))
A("v_mul_f32 v%d, %s, v%d" % (M1, INV448, M1))
A("v_mul_f32 v%d, %s, v%d" % (V1, INV448, V1))
A("v_fma_f32 v%d, -v%d, v%d, v%d" % (V1, M1, M1, V1))
A("v_max_f32 v%d, 0, v%d" % (V1, V1))
HR = 200
ln_finish(M1, V1, XF, HR)
A("s_mov_b64 exec, %s" % sE)
A("ds_write_b128 v10, %s offset:%d" % (vr(HR, 4), 8 * PST))
A("ds_write_b128 v10, %s offset:%d" % (vr(HR + 4, 4), 8 * PST + 448))
A("s_mov_b64 exec, -1")

A("s_cmp_eq_u32 %s, 0" % sT[4])
A("s_cbranch_scc1 L_nounit1")
A("s_cmp_eq_u32 %s, 2" % sW)
A("s_cbranch_scc1 L_ident")
for j in range(8):
    A("v_lshl_or_b32 v%d, v%d, 16, v%d" % (UP + j, UB + 2 * j + 1, UB + 2 * j))
A("s_branch L_unitmm")
A.label("L_ident")
A("v_lshlrev_b32 v%d, 3, v8" % T0)
A("v_sub_u32 v%d, v9, v%d" % (T0, T0))
A("v_cmp_gt_u32 vcc, 28, v9")
A("v_mov_b32 v%d, 100" % (T0 + 1))
A("v_cndmask_b32 v%d, v%d, v%d, vcc" % (T0, T0 + 1, T0))
A("v_and_b32 v%d, 1, v%d" % (T0 + 1, T0))
A("v_lshlrev_b32 v%d, 4, v%d" % (T0 + 1, T0 + 1))
A("v_mov_b32 v%d, 0x3f80" % (T0 + 2))
A("v_lshlrev_b32 v%d, v%d, v%d" % (T0 + 1, T0 + 1, T0 + 2))
A("v_ashrrev_i32 v%d, 1, v%d" % (T0, T0))
for ks in range(2):
    for p in range(4):
        A("v_cmp_eq_u32 vcc, %d, v%d" % (8 * ks + p, T0))
        A("v_cndmask_b32 v%d, 0, v%d, vcc" % (UP + 4 * ks + p, T0 + 1))
A.label("L_unitmm")
A("v_mfma_f32_32x32x16_bf16 v[32:47], %s, %s, 0" % (vr(UA, 4), vr(UP, 4)))
A("v_mfma_f32_32x32x16_bf16 v[32:47], %s, %s, v[32:47]" % (vr(UA + 4, 4), vr(UP + 4, 4)))
A("s_mul_i32 %s, %s, 86016" % (sT[5], sT[2]))
A("s_mul_i32 %s, %s, 6144" % (sT[6], sT[3]))
A("s_add_u32 %s, %s, %s" % (sT[5], sT[5], sT[6]))
A("s_lshl_b32 %s, %s, 10" % (sT[6], sW))
A("s_add_u32 %s, %s, %s" % (sT[5], sT[5], sT[6]))
A("s_add_u32 %s, %s, %d" % (sT[5], sT[5], WF))
pack(48, 32, 8)
A("buffer_store_dwordx4 v[48:51], v1, %s, %s offen sc1" % (sWS, sT[5]))
A("buffer_store_dwordx4 v[52:55], v1, %s, %s offen offset:3072 sc1" % (sWS, sT[5]))
A.label("L_nounit1")
A("s_cmp_lg_u32 %s, 3" % sW)
A("s_cbranch_scc1 L_nozero")
A("v_mov_b32 v56, 0")
A("v_mov_b32 v57, 0")
A("v_lshlrev_b32 v58, 3, v0")
A("s_lshl_b32 %s, s2, 9" % sT[5])
A("s_add_u32 %s, %s, %d" % (sT[5], sT[5], KV))
A("buffer_store_dwordx2 v[56:57], v58, %s, %s offen sc1" % (sWS, sT[5]))
A.label("L_nozero")
A("s_waitcnt lgkmcnt(0)")
A("s_barrier")
A("s_mul_i32 %s, %s, 0x9e3779b1" % (sNON, sNON))
A("s_add_u32 %s, %s, 0x7f4a7c15" % (sNON, sNON))
A("v_and_b32 v10, 7, v0")
A("v_lshrrev_b32 v11, 3, v0")
A("v_mul_u32_u24 v12, %d, v10" % PST)
A("v_lshl_add_u32 v12, v11, 4, v12")
A("v_lshlrev_b32 v13, 9, v11")
A("v_lshl_add_u32 v13, v10, 4, v13")
A("v_bfe_u32 v10, v0, 2, 2")
A("v_mul_u32_u24 v14, %d, v10" % PST)
A("v_lshrrev_b32 v10, 4, v0")
A("v_lshl_add_u32 v14, v10, 5, v14")
A("v_and_b32 v10, 3, v0")
A("v_lshl_add_u32 v14, v10, 3, v14")
A("v_lshlrev_b32 v11, 10, v8")
A("v_lshl_add_u32 v11, v9, 4, v11")
A("s_lshl_b32 %s, %s, 7" % (sT[5], sW))
A("s_add_u32 %s, %s, %d" % (sT[5], sT[5], PREP))
A("v_add_u32 v12, %s, v12" % sT[5])
A("v_add_u32 v14, %s, v14" % sT[5])
A("ds_read_b128 v[60:63], v12")
A("ds_read_b64_tr_b16 v[64:65], v14 offset:%d" % (8 * PST))
A("ds_read_b64_tr_b16 v[66:67], v14 offset:%d" % (12 * PST))
A("ds_read_b128 v[68:71], v12 offset:512")
A("ds_read_b64_tr_b16 v[72:73], v14 offset:%d" % (8 * PST + 512))
A("ds_read_b64_tr_b16 v[74:75], v14 offset:%d" % (12 * PST + 512))
A("s_lshr_b32 %s, s2, 2" % sT[5])
A("s_mul_i32 %s, %s, 28672" % (sT[5], sT[5]))
A("s_and_b32 %s, s2, 3" % sT[6])
A("s_lshl_b32 %s, %s, 7" % (sT[6], sT[6]))
A("s_add_u32 %s, %s, %s" % (sT[5], sT[5], sT[6]))
A("s_lshl_b32 %s, %s, 12" % (sT[6], sW))
A("s_add_u32 %s, %s, %s" % (sT[5], sT[5], sT[6]))
A("s_add_u32 %s, %s, %d" % (sT[5], sT[5], XNF))
A("s_lshr_b32 %s, s2, 1" % sT[6])
A("s_lshl_b32 %s, %s, 11" % (sT[6], sT[6]))
A("s_and_b32 %s, s2, 1" % sT[7])
A("s_lshl_b32 %s, %s, 9" % (sT[7], sT[7]))
A("s_add_u32 %s, %s, %s" % (sT[6], sT[6], sT[7]))
A("s_lshl_b32 %s, %s, 18" % (sT[7], sW))
A("s_add_u32 %s, %s, %s" % (sT[6], sT[6], sT[7]))
A("s_add_u32 %s, %s, %d" % (sT[6], sT[6], HF))
A("s_waitcnt lgkmcnt(3)")
A("buffer_store_dwordx4 v[60:63], v13, %s, %s offen sc1" % (sWS, sT[5]))
A("buffer_store_dwordx4 v[64:67], v11, %s, %s offen sc1" % (sWS, sT[6]))
A("s_cmp_eq_u32 %s, 3" % sW)
A("s_cbranch_scc1 L_noj2")
A("s_add_u32 %s, %s, %d" % (sT[5], sT[5], 4 * 4096))
A("s_add_u32 %s, %s, %d" % (sT[6], sT[6], 4 << 18))
A("s_waitcnt lgkmcnt(0)")
A("buffer_store_dwordx4 v[68:71], v13, %s, %s offen sc1" % (sWS, sT[5]))
A("buffer_store_dwordx4 v[72:75], v11, %s, %s offen sc1" % (sWS, sT[6]))
A.label("L_noj2")
A("s_waitcnt vmcnt(0) lgkmcnt(0)")
vm.q = []
A("s_barrier")
A("s_cmp_lg_u32 %s, 0" % sW)
A("s_cbranch_scc1 L_nof0")
A("s_lshl_b32 %s, s2, 2" % sT[5])
flag_store(sT[5])
A.label("L_nof0")
vm.q = []
stamp()
A("s_cmp_eq_u32 %s, 0" % sG1)
A("s_cbranch_scc1 L_w1skip")
def tr4(dst, slot, second, pfx="a"):
    o = slot * 2048
    A("ds_read_b64_tr_b16 %s, v4 offset:%d" % (vr(dst, 2, pfx), o))
    A("ds_read_b64_tr_b16 %s, v4 offset:%d" % (vr(dst + 2, 2, pfx), o + second))
    A("ds_read_b64_tr_b16 %s, v5 offset:%d" % (vr(dst + 4, 2, pfx), o))
    A("ds_read_b64_tr_b16 %s, v5 offset:%d" % (vr(dst + 6, 2, pfx), o + second))
for i in range(16):
    tr4(8 * i, i, 512)
    if i >= 1:
        A("s_waitcnt lgkmcnt(4)")
        dma2(sW1, i - 1, (16 + i - 1) * 16 * 3584, ("w1", 16 + i - 1), NT)
A("s_waitcnt lgkmcnt(0)")
dma2(sW1, 15, 31 * 16 * 3584, ("w1", 31), NT)
for i in range(16, 32):
    vm.wait(("w1", i))
    tr4(8 * i, i - 16, 512)
A("s_waitcnt lgkmcnt(0)")
A("s_branch L_w1done")
A.label("L_w1skip")
if opt["pf"]:
    A("s_cmp_lt_u32 %s, 25" % sSLOT)
    A("s_cbranch_scc1 L_w1done")
    A("v_lshrrev_b32 v10, 2, v0")
    A("v_lshlrev_b32 v10, 12, v10")
    A("v_and_b32 v11, 3, v0")
    A("v_lshl_add_u32 v10, v11, 7, v10")
    A("s_sub_u32 %s, %s, 25" % (sT[5], sSLOT))
    A("s_lshl_b32 %s, %s, 2" % (sT[5], sT[5]))
    A("s_add_u32 %s, %s, %s" % (sT[5], sT[5], sW))
    A("s_lshl_b32 %s, %s, 18" % (sT[5], sT[5]))
    A("s_lshl_b32 %s, %s, 9" % (sT[6], sXCD))
    A("s_add_u32 %s, %s, %s" % (sT[5], sT[5], sT[6]))
    for i in range(4):
        A("buffer_load_dword v%d, v10, %s, %s offen%s" % (240 + i, sW2, sT[5], NT))
        A("s_add_u32 %s, %s, %d" % (sT[5], sT[5], 16 * 4096))
A.label("L_w1done")
stamp()
poll("v1", "0", width=4)
A("s_barrier")
A("s_or_b32 %s, s2, %s" % (sT[5], sW))
A("s_cmp_lg_u32 %s, 0" % sT[5])
A("s_cbranch_scc1 L_noep")
A("s_mov_b32 %s, %d" % (sT[5], EPOCH))
flag_store(sT[5])
A("s_waitcnt vmcnt(0)")
A.label("L_noep")
vm.q = []
stamp()
AQ, AK, AV = 32, 48, 64
XN = 96
WB = 208
A("s_mul_i32 %s, %s, 86016" % (sT[0], sHH))
A("s_lshl_b32 %s, %s, 10" % (sT[1], sW))
A("s_add_u32 %s, %s, %s" % (sT[0], sT[0], sT[1]))
A("s_add_u32 %s, %s, %d" % (sT[0], sT[0], WF))
A("s_lshl_b32 %s, %s, 2" % (sT[2], sC))
A("s_add_u32 %s, %s, %s" % (sT[2], sT[2], sW))
A("s_mul_i32 %s, %s, 28672" % (sT[2], sT[2]))
A("s_add_u32 %s, %s, %d" % (sT[2], sT[2], XNF))
GI = [0, 6, 11, 16, 21]
def a1_ops(j):
    ops = []
    for i in range(GI[j], GI[j + 1]):
        def f(i=i):
            A("s_add_u32 m0, %s, %d" % (sT[1], i * 4096))
            A("s_add_u32 %s, %s, %d" % (sT[9], sT[0], i * 4096))
            vm.op("buffer_load_dwordx4 v1, %s, %s offen sc1 lds" % (sWS, sT[9]), ("g", j))
        ops.append(f)
    for ks in range(7 * j, 7 * j + 7):
        def f(ks=ks):
            if ks % 4 == 0 and ks: A("s_add_u32 %s, %s, 4096" % (sT[2], sT[2]))
            vm.op("buffer_load_dwordx4 %s, v1, %s, %s offen offset:%d sc1" % (vr(XN + 4 * ks, 4), sWS, sT[2], (ks % 4) * 1024), ("g", j))
        ops.append(f)
    return ops
DH = 14; HB = 96
A("s_and_b32 %s, %s, 1" % (sT[3], sW))
A("s_lshl_b32 %s, %s, 10" % (sT[3], sT[3]))
A("v_add_u32 v6, %s, v1" % sT[3])
A("v_xor_b32 v7, 0x400, v6")
A("s_lshl_b32 %s, %s, 7" % (sT[3], sDT1))
A("s_lshl_b32 %s, %s, 5" % (sT[4], sW))
A("s_add_u32 %s, %s, %s" % (sT[3], sT[3], sT[4]))
A("s_lshl_b32 %s, %s, 11" % (sT[3], sT[3]))
A("s_add_u32 %s, %s, %d" % (sT[3], sT[3], HF))
def ldh(i):
    b = HB + (i % DH) * 8
    A("s_add_u32 %s, %s, %d" % (sT[9], sT[3], i * 2048))
    vm.op("buffer_load_dwordx4 %s, v6, %s, %s offen sc1" % (vr(b, 4), sWS, sT[9]), ("h", i))
    vm.op("buffer_load_dwordx4 %s, v7, %s, %s offen sc1" % (vr(b + 4, 4), sWS, sT[9]), ("h", i))
for f in a1_ops(0) + a1_ops(1): f()
def rdw(ks):
    b = WB + (ks & 1) * 12
    base = ks * 3072
    va = "v1"
    if base + 2048 > 65535:
        va = "v10"; base -= 49152
    for q in range(3):
        A("ds_read_b128 %s, %s offset:%d" % (vr(b + 4 * q, 4), va, base + 1024 * q))
A("v_add_u32 v10, 49152, v1")
for j in range(4):
    pend = a1_ops(j + 2) if j + 2 < 4 else []
    vm.wait(("g", j))
    A("s_barrier")
    rdw(7 * j)
    for kk in range(7):
        ks = 7 * j + kk
        if kk < 6:
            rdw(ks + 1)
            A("s_waitcnt lgkmcnt(3)")
        else:
            A("s_waitcnt lgkmcnt(0)")
        b = WB + (ks & 1) * 12
        x = vr(XN + 4 * ks, 4)
        c = (lambda r: "0" if ks == 0 else vr(r, 16))
        A("v_mfma_f32_32x32x16_bf16 %s, %s, %s, %s" % (vr(AK, 16), vr(b + 4, 4), x, c(AK)))
        A("v_mfma_f32_32x32x16_bf16 %s, %s, %s, %s" % (vr(AV, 16), x, vr(b + 8, 4), c(AV)))
        A("v_mfma_f32_32x32x16_bf16 %s, %s, %s, %s" % (vr(AQ, 16), vr(b, 4), x, c(AQ)))
        n = (len(pend) + (6 - kk)) // (7 - kk)
        for f in pend[:n]: f()
        pend = pend[n:]
stamp()
for i in range(DH): ldh(i)

LOG2E = "0x3fb8aa3b"
S0 = 208
def dual_softmax(acc, outp, outn):
    EP, EN = S0, S0 + 16
    mx, mn, t1, t2 = 240, 242, 244, 245
    for r in range(12, 16):
        A("v_cndmask_b32 v%d, v%d, v%d, %s" % (acc + r, acc + r, acc, sGM))
    for (op, d) in (("max", mx), ("min", mn)):
        A("v_%s3_f32 v%d, v%d, v%d, v%d" % (op, d, acc, acc + 1, acc + 2))
        A("v_%s3_f32 v%d, v%d, v%d, v%d" % (op, d + 1, acc + 3, acc + 4, acc + 5))
    for k in range(2):
        for (op, d) in (("max", mx), ("min", mn)):
            A("v_%s3_f32 v%d, v%d, v%d, v%d" % (op, d, d, acc + 6 + 4 * k, acc + 7 + 4 * k))
            A("v_%s3_f32 v%d, v%d, v%d, v%d" % (op, d + 1, d + 1, acc + 8 + 4 * k, acc + 9 + 4 * k))
    for (op, d) in (("max", mx), ("min", mn)):
        A("v_%s3_f32 v%d, v%d, v%d, v%d" % (op, d, d, acc + 14, acc + 15))
    for (op, d) in (("max", mx), ("min", mn)):
        A("v_%s_f32 v%d, v%d, v%d" % (op, d, d, d + 1))
    A("v_mov_b32 v%d, v%d" % (t1, mx))
    A("v_mov_b32 v%d, v%d" % (t2, mn))
    A("v_permlane32_swap_b32 v%d, v%d" % (mx, t1))
    A("v_permlane32_swap_b32 v%d, v%d" % (mn, t2))
    A("v_max_f32 v%d, v%d, v%d" % (mx, mx, t1))
    A("v_min_f32 v%d, v%d, v%d" % (mn, mn, t2))
    A("v_mov_b32 v246, %s" % LOG2E)
    A("v_mul_f32 v%d, %s, v%d" % (mx, LOG2E, mx))
    A("v_mul_f32 v%d, %s, v%d" % (mn, LOG2E, mn))
    for i in range(8):
        A("v_pk_fma_f32 %s, %s, v[246:247], %s op_sel_hi:[1,0,0] neg_lo:[0,0,1] neg_hi:[0,0,1]" % (P(EP + 2 * i), P(acc + 2 * i), P(mx)))
        A("v_pk_fma_f32 %s, %s, v[246:247], %s op_sel_hi:[1,0,0] neg_lo:[1,0,0] neg_hi:[1,0,0]" % (P(EN + 2 * i), P(acc + 2 * i), P(mn)))
    for i in range(32):
        A("v_exp_f32 v%d, v%d" % (S0 + i, S0 + i))
    for r in range(12, 16):
        A("v_cndmask_b32 v%d, v%d, 0, %s" % (EP + r, EP + r, sGM))
        A("v_cndmask_b32 v%d, v%d, 0, %s" % (EN + r, EN + r, sGM))
    pksum(mx, EP, acc)
    pksum(mn, EN, acc + 8)
    A("v_mov_b32 v%d, v%d" % (t1, mx))
    A("v_mov_b32 v%d, v%d" % (t2, mn))
    A("v_permlane32_swap_b32 v%d, v%d" % (mx, t1))
    A("v_permlane32_swap_b32 v%d, v%d" % (mn, t2))
    A("v_add_f32 v%d, v%d, v%d" % (mx, mx, t1))
    A("v_add_f32 v%d, v%d, v%d" % (mn, mn, t2))
    A("v_rcp_f32 v%d, v%d" % (mx, mx))
    A("v_rcp_f32 v%d, v%d" % (mn, mn))
    pkmul_s(EP, EP, mx)
    pkmul_s(EN, EN, mn)
    pack(outp, EP, 8)
    pack(outn, EN, 8)

PK = 80
dual_softmax(AK, PK, PK + 8)
A("v_lshrrev_b32 v8, 5, v0")
A("v_and_b32 v9, 31, v0")
A("v_lshlrev_b32 v10, 7, v9")
A("v_lshl_add_u32 v10, v8, 3, v10")
A("v_and_b32 v11, 2, v9")
A("v_lshl_add_u32 v10, v11, 5, v10")
A("s_lshl_b32 %s, %s, 12" % (sT[5], sW))
A("s_add_u32 %s, %s, %d" % (sT[5], sT[5], PHK))
A("v_add_u32 v10, %s, v10" % sT[5])
A("v_xor_b32 v11, 64, v10")
for m in range(4):
    A("ds_write_b64 v10, %s offset:%d" % (P(PK + 2 * m), 16 * m))
    A("ds_write_b64 v11, %s offset:%d" % (P(PK + 8 + 2 * m), 16 * m))
pack(AK, AV, 8)
A("v_cmp_eq_u32 vcc, 28, v9")
A("v_mov_b32 v12, 0x3f803f80")
for i in range(8):
    A("v_cndmask_b32 v%d, v%d, v12, vcc" % (AK + i, AK + i))
A("s_lshl_b32 %s, %s, 11" % (sT[5], sW))
A("s_add_u32 %s, %s, %d" % (sT[5], sT[5], VFL))
A("v_add_u32 v12, %s, v1" % sT[5])
A("ds_write_b128 v12, %s" % vr(AK, 4))
A("ds_write_b128 v12, %s offset:1024" % vr(AK + 4, 4))
A("v_lshlrev_b32 v13, 9, v8")
A("v_bfe_u32 v14, v0, 2, 2")
A("v_lshl_add_u32 v13, v14, 7, v13")
A("v_lshrrev_b32 v14, 1, v14")
A("v_lshl_add_u32 v13, v14, 6, v13")
A("v_bfe_u32 v14, v0, 4, 1")
A("v_lshl_add_u32 v13, v14, 5, v13")
A("v_and_b32 v14, 3, v0")
A("v_lshl_add_u32 v13, v14, 3, v13")
A("s_and_b32 %s, %s, 1" % (sT[5], sW))
A("s_lshl_b32 %s, %s, 6" % (sT[5], sT[5]))
A("s_lshr_b32 %s, %s, 1" % (sT[6], sW))
A("s_lshl_b32 %s, %s, 5" % (sT[6], sT[6]))
A("s_or_b32 %s, %s, %s" % (sT[5], sT[5], sT[6]))
A("v_xor_b32 v13, %s, v13" % sT[5])
A("v_add_u32 v13, %d, v13" % PHK)
A("v_add_u32 v14, %d, v1" % VFL)
A("s_waitcnt lgkmcnt(0)")
A("s_barrier")
KA, KB = 208, 48
for k8 in range(8):
    A("ds_read_b64_tr_b16 %s, v13 offset:%d" % (P(KA + 4 * k8), k8 * 2048))
    A("ds_read_b64_tr_b16 %s, v13 offset:%d" % (P(KA + 4 * k8 + 2), k8 * 2048 + 1024))
    A("ds_read_b128 %s, v14 offset:%d" % (vr(KB + 4 * k8, 4), k8 * 1024))
    if k8 == 3: pass
for k8 in range(8):
    A("s_waitcnt lgkmcnt(%d)" % min(15, 3 * (7 - k8)))
    A("v_mfma_f32_32x32x16_bf16 v[80:95], %s, %s, %s" % (vr(KA + 4 * k8, 4), vr(KB + 4 * k8, 4), "0" if k8 == 0 else "v[80:95]"))
A("v_lshlrev_b32 v12, 2, v0")
A("s_lshl_b32 %s, %s, 13" % (sT[5], sHH))
A("s_and_b32 %s, %s, 1" % (sT[6], sW))
A("s_lshl_b32 %s, %s, 12" % (sT[6], sT[6]))
A("s_add_u32 %s, %s, %s" % (sT[5], sT[5], sT[6]))
A("s_lshr_b32 %s, %s, 1" % (sT[6], sW))
A("s_lshl_b32 %s, %s, 11" % (sT[6], sT[6]))
A("s_add_u32 %s, %s, %s" % (sT[5], sT[5], sT[6]))
A("s_add_u32 %s, %s, %d" % (sT[5], sT[5], KV))
for r in range(8):
    vm.op("buffer_atomic_add_f32 v%d, v12, %s, %s offen offset:%d" % (80 + r, sWS, sT[5], r * 256), "atom")
dual_softmax(AQ, 16, 24)
A("s_lshl_b32 %s, %s, 4" % (sT[4], sHH))
A("s_add_u32 %s, %s, %s" % (sT[4], sT[4], sC))
A("s_lshl_b32 %s, %s, 2" % (sT[4], sT[4]))
A("s_add_u32 %s, %s, %s" % (sT[4], sT[4], sW))
A("s_lshl_b32 %s, %s, 2" % (sT[4], sT[4]))
A("s_add_u32 %s, %s, %d" % (sT[4], sT[4], F1))
stamp()
A("s_cmp_eq_u32 %s, 0" % sG1)
A("s_cbranch_scc1 L_g1skip")
BI = 232
for i in range(32):
    vm.wait(("h", i))
    if i == DH:
        flag_store(sT[4])
    b = HB + (i % DH) * 8
    for t in range(4):
        c = "0" if i == 0 else vr(32 + 16 * t, 16)
        A("v_mfma_f32_32x32x16_bf16 %s, %s, %s, %s" % (vr(32 + 16 * t, 16), ar(8 * i + 4 * (t >> 1), 4), vr(b + 4 * (t & 1), 4), c))
    if i + DH < 32: ldh(i + DH)
    if i == 32 - DH:
        A("v_lshrrev_b32 v8, 5, v0")
        A("v_lshlrev_b32 v8, 3, v8")
        A("s_lshl_b32 %s, %s, 1" % (sT[5], sFT))
        A("s_lshr_b32 %s, %s, 1" % (sT[6], sW))
        A("s_add_u32 %s, %s, %s" % (sT[5], sT[5], sT[6]))
        A("s_lshl_b32 %s, %s, 6" % (sT[5], sT[5]))
        for m in range(4):
            vm.op("buffer_load_dwordx2 %s, v8, %s, %s offen offset:%d" % (P(BI + 2 * m), sB1, sT[5], 16 * m), "bias")
A("s_branch L_g1done")
A.label("L_g1skip")
A("s_waitcnt vmcnt(0)")
A("v_mov_b32 v249, %s" % sNON)
A("v_mov_b32 v248, 0")
A("s_mov_b64 exec, 1")
A("buffer_store_dword v249, v248, %s, %s offen sc1" % (sWS, sT[4]))
A("s_mov_b64 exec, -1")
A.label("L_g1done")
A("s_waitcnt vmcnt(0)")
vm.q = []
stamp()
A("s_barrier")
dma_src_setup(4096)
A("s_mul_i32 %s, %s, 28672" % (sRB, sW))
tr_setup(9)
A("v_xor_b32 v5, 64, v4")
A("s_mul_i32 %s, %s, %d" % (sSO, sW, 448 * 4096))
A("s_lshl_b32 %s, %s, 7" % (sT[5], sST))
A("s_add_u32 %s, %s, %s" % (sSO, sSO, sT[5]))
A("s_cmp_eq_u32 %s, 0" % sFIN)
A("s_cbranch_scc1 L_now2a")
for i in range(14):
    dma2(sW2, i, i * 16 * 4096, ("w2", i))
A.label("L_now2a")
vm.q = []
A("s_cmp_eq_u32 %s, 0" % sG1)
A("s_cbranch_scc1 L_g1epskip")
for t in range(1, 4):
    A("s_xor_b32 %s, %s, %d" % (sT[5], sW, t))
    A("s_mul_i32 %s, %s, 12288" % (sT[5], sT[5]))
    A("s_add_u32 %s, %s, %d" % (sT[5], sT[5], RED1 + (t - 1) * 4096))
    A("v_add_u32 v%d, %s, v1" % (8 + t, sT[5]))
    for q in range(4):
        A("ds_write_b128 v%d, %s offset:%d" % (8 + t, vr(32 + 16 * t + 4 * q, 4), 1024 * q))
A("s_mul_i32 %s, %s, 12288" % (sT[5], sW))
A("s_add_u32 %s, %s, %d" % (sT[5], sT[5], RED1))
A("v_add_u32 v8, %s, v1" % sT[5])
unpack(96, BI, 8)
for i in range(8):
    A("v_pk_add_f32 %s, %s, %s" % (P(32 + 2 * i), P(32 + 2 * i), P(96 + 2 * i)))
A("s_waitcnt lgkmcnt(0)")
A("s_barrier")
for q in range(12):
    A("ds_read_b128 %s, v8 offset:%d" % (vr(48 + 4 * q, 4), 1024 * q))
for t in range(3):
    A("s_waitcnt lgkmcnt(%d)" % (8 - 4 * t))
    for i in range(8):
        A("v_pk_add_f32 %s, %s, %s" % (P(32 + 2 * i), P(32 + 2 * i), P(48 + 16 * t + 2 * i)))
A("v_mov_b32 v10, 0xc0135761")
A("v_mov_b32 v12, 0xbdd2d3e8")
for i in range(8):
    A("v_pk_mul_f32 %s, %s, %s" % (P(48 + 2 * i), P(32 + 2 * i), P(32 + 2 * i)))
for i in range(8):
    A("v_pk_fma_f32 %s, %s, v[12:13], v[10:11] op_sel_hi:[1,0,0]" % (P(48 + 2 * i), P(48 + 2 * i)))
for i in range(8):
    A("v_pk_mul_f32 %s, %s, %s" % (P(48 + 2 * i), P(48 + 2 * i), P(32 + 2 * i)))
for i in range(16):
    A("v_exp_f32 v%d, v%d" % (48 + i, 48 + i))
for i in range(16):
    A("v_add_f32 v%d, 1.0, v%d" % (48 + i, 48 + i))
for i in range(16):
    A("v_rcp_f32 v%d, v%d" % (48 + i, 48 + i))
for i in range(8):
    A("v_pk_mul_f32 %s, %s, %s" % (P(32 + 2 * i), P(32 + 2 * i), P(48 + 2 * i)))
pack(64, 32, 8)
A("s_mul_i32 %s, %s, 112" % (sT[5], sDT1))
A("s_lshl_b32 %s, %s, 2" % (sT[6], sFT))
A("s_add_u32 %s, %s, %s" % (sT[5], sT[5], sT[6]))
A("s_and_b32 %s, %s, 2" % (sT[6], sW))
A("s_add_u32 %s, %s, %s" % (sT[5], sT[5], sT[6]))
A("s_lshl_b32 %s, %s, 1" % (sT[5], sT[5]))
A("s_and_b32 %s, %s, 1" % (sT[6], sW))
A("s_add_u32 %s, %s, %s" % (sT[5], sT[5], sT[6]))
A("s_lshl_b32 %s, %s, 10" % (sT[5], sT[5]))
A("s_add_u32 %s, %s, %d" % (sT[5], sT[5], UF))
A("buffer_store_dwordx4 v[64:67], v1, %s, %s offen sc1" % (sWS, sT[5]))
A("buffer_store_dwordx4 v[68:71], v1, %s, %s offen offset:2048 sc1" % (sWS, sT[5]))
A("s_waitcnt vmcnt(0)")
A("s_lshl_b32 %s, %s, 5" % (sT[5], sDT1))
A("s_add_u32 %s, %s, %s" % (sT[5], sT[5], sFT))
A("s_lshl_b32 %s, %s, 2" % (sT[5], sT[5]))
A("s_add_u32 %s, %s, %s" % (sT[5], sT[5], sW))
A("s_lshl_b32 %s, %s, 2" % (sT[5], sT[5]))
A("s_add_u32 %s, %s, %d" % (sT[5], sT[5], F2))
flag_store(sT[5])
A.label("L_g1epskip")
vm.q = []
stamp()
A("v_lshlrev_b32 v12, 2, v0")
A("s_lshl_b32 %s, %s, 8" % (sT[5], sHH))
A("s_add_u32 %s, %s, %d" % (sT[5], sT[5], F1))
poll("v12", sT[5])
A("s_lshl_b32 %s, %s, 13" % (sT[5], sHH))
A("s_add_u32 %s, %s, %d" % (sT[5], sT[5], KV))
A("s_add_u32 %s, %s, 4096" % (sT[6], sT[5]))
for r in range(32):
    A("buffer_load_dword v%d, v12, %s, %s offen offset:%d sc1" % (96 + r, sWS, sT[5 + r // 16], (r % 16) * 256))
A("s_waitcnt vmcnt(0)")
pack(128, 96, 16)
for k in range(4):
    A("v_mfma_f32_32x32x16_bf16 v[32:47], %s, %s, %s" % (vr(128 + 4 * k, 4), vr(16 + 4 * k, 4), "0" if k == 0 else "v[32:47]"))
A("v_mov_b32 v48, v44")
A("v_mov_b32 v50, v44")
A("v_permlane32_swap_b32 v48, v50")
A("v_add_f32 v50, 0x358637bd, v50")
A("v_rcp_f32 v50, v50")
A("v_cndmask_b32 v44, v44, 0, %s" % sGM)
pkmul_s(32, 32, 50)
pack(64, 32, 8)
A("s_lshl_b32 %s, %s, 1" % (sT[5], sC))
A("s_lshr_b32 %s, %s, 1" % (sT[6], sW))
A("s_add_u32 %s, %s, %s" % (sT[5], sT[5], sT[6]))
A("s_lshl_b32 %s, %s, 4" % (sT[7], sT[5]))
A("s_add_u32 %s, %s, %s" % (sT[7], sT[7], sHH))
A("s_lshl_b32 %s, %s, 2" % (sT[5], sT[7]))
A("s_and_b32 %s, %s, 1" % (sT[6], sW))
A("s_add_u32 %s, %s, %s" % (sT[5], sT[5], sT[6]))
A("s_lshl_b32 %s, %s, 10" % (sT[5], sT[5]))
A("s_add_u32 %s, %s, %d" % (sT[5], sT[5], OF))
A("buffer_store_dwordx4 v[64:67], v1, %s, %s offen sc1" % (sWS, sT[5]))
A("buffer_store_dwordx4 v[68:71], v1, %s, %s offen offset:2048 sc1" % (sWS, sT[5]))
A("s_lshl_b32 %s, %s, 1" % (sT[7], sT[7]))
A("s_add_u32 %s, %s, %s" % (sT[7], sT[7], sT[6]))
A("s_lshl_b32 %s, %s, 2" % (sT[7], sT[7]))
A("s_add_u32 %s, %s, %d" % (sT[7], sT[7], F3))
A("s_waitcnt vmcnt(0)")
flag_store(sT[7])
vm.q = []
stamp()
A("s_cmp_eq_u32 %s, 0" % sFIN)
A("s_cbranch_scc1 L_fin")
for i in range(14):
    tr4(8 * i, i, 1024)
    if i >= 1:
        A("s_waitcnt lgkmcnt(4)")
        dma2(sW2, i - 1, (14 + i - 1) * 16 * 4096, ("w2", 14 + i - 1))
A("s_waitcnt lgkmcnt(0)")
dma2(sW2, 13, 27 * 16 * 4096, ("w2", 27))
dma_src_setup(896)
A("s_mul_i32 %s, %s, %d" % (sSO, sW, 112 * 896))
A("s_lshl_b32 %s, %s, 7" % (sT[5], sDT2))
A("s_add_u32 %s, %s, %s" % (sSO, sSO, sT[5]))
for i in range(14, 28):
    vm.wait(("w2", i))
    tr4(8 * i, i - 14, 1024)
    kk = i - 15
    if 0 <= kk < 8:
        A("s_waitcnt lgkmcnt(4)")
        dma2(sWO, kk, (28 * (kk // 2) + 16 * (kk % 2)) * 896, ("wo", kk))
RX, RB2 = 16, 24
A("v_lshrrev_b32 v8, 3, v0")
A("v_and_b32 v9, 7, v0")
A("v_mul_u32_u24 v10, 896, v8")
A("v_lshl_add_u32 v10, v9, 4, v10")
A("v_lshlrev_b32 v11, 1, v8")
A("s_lshl_b32 %s, %s, 3" % (sT[0], sST))
A("s_add_u32 %s, %s, %s" % (sT[0], sT[0], sW))
A("s_lshl_b32 %s, %s, 3" % (sT[0], sT[0]))
A("s_lshl_b32 %s, %s, 1" % (sT[1], sT[0]))
A("s_mul_i32 %s, %s, 896" % (sT[0], sT[0]))
A("s_lshl_b32 %s, %s, 7" % (sT[2], sDT2))
A("s_add_u32 %s, %s, %s" % (sT[0], sT[0], sT[2]))
A("s_add_u32 %s, %s, %d" % (sT[2], sT[0], 32 * 896))
A("buffer_load_dwordx4 %s, v10, %s, %s offen" % (vr(RX, 4), sX, sT[0]))
A("buffer_load_dwordx4 %s, v10, %s, %s offen" % (vr(RX + 4, 4), sX, sT[2]))
A("buffer_load_ushort v%d, v11, %s, %s offen" % (RB2, sB2, sT[1]))
A("buffer_load_ushort v%d, v11, %s, %s offen offset:64" % (RB2 + 2, sB2, sT[1]))
A("v_min_u32 v12, 27, v0")
A("v_lshlrev_b32 v12, 2, v12")
A("s_lshl_b32 %s, %s, 5" % (sT[5], sDT2))
A("s_mul_i32 %s, %s, 7" % (sT[6], sW))
A("s_add_u32 %s, %s, %s" % (sT[5], sT[5], sT[6]))
A("s_lshl_b32 %s, %s, 4" % (sT[5], sT[5]))
A("s_add_u32 %s, %s, %d" % (sT[5], sT[5], F2))
poll("v12", sT[5])
A("s_waitcnt lgkmcnt(0)")
stamp()
DU = 8; UBASE = 96
A("s_mul_i32 %s, %s, 112" % (sT[3], sDT2))
A("s_mul_i32 %s, %s, 28" % (sT[4], sW))
A("s_add_u32 %s, %s, %s" % (sT[3], sT[3], sT[4]))
A("s_lshl_b32 %s, %s, 11" % (sT[3], sT[3]))
A("s_add_u32 %s, %s, %d" % (sT[3], sT[3], UF))
def ldu(i):
    b = UBASE + (i % DU) * 8
    A("s_add_u32 %s, %s, %d" % (sT[9], sT[3], i * 2048))
    vm.op("buffer_load_dwordx4 %s, v1, %s, %s offen sc1" % (vr(b, 4), sWS, sT[9]), ("u", i))
    vm.op("buffer_load_dwordx4 %s, v1, %s, %s offen offset:1024 sc1" % (vr(b + 4, 4), sWS, sT[9]), ("u", i))
for i in range(DU): ldu(i)
for i in range(28):
    vm.wait(("u", i))
    b = UBASE + (i % DU) * 8
    for t in range(4):
        c = "0" if i == 0 else vr(32 + 16 * t, 16)
        A("v_mfma_f32_32x32x16_bf16 %s, %s, %s, %s" % (vr(32 + 16 * t, 16), vr(b + 4 * (t >> 1), 4), ar(8 * i + 4 * (t & 1), 4), c))
    if i + DU < 28: ldu(i + DU)
A("v_min_u32 v12, 7, v0")
A("v_lshlrev_b32 v12, 2, v12")
A("s_lshl_b32 %s, %s, 2" % (sT[5], sST))
A("s_add_u32 %s, %s, %s" % (sT[5], sT[5], sW))
A("s_lshl_b32 %s, %s, 5" % (sT[6], sT[5]))
A("s_add_u32 %s, %s, %d" % (sT[6], sT[6], F3))
poll("v12", sT[6])
A("s_lshl_b32 %s, %s, 14" % (sT[5], sT[5]))
A("s_add_u32 %s, %s, %d" % (sT[5], sT[5], OF))
OB, WOB = 96, 160
for kk in range(8):
    if kk % 2 == 0 and kk: A("s_add_u32 %s, %s, 4096" % (sT[5], sT[5]))
    for h in range(2):
        vm.op("buffer_load_dwordx4 %s, v1, %s, %s offen offset:%d sc1" % (vr(OB + 8 * kk + 4 * h, 4), sWS, sT[5], (kk % 2) * 2048 + h * 1024), ("o", kk))
for kk in range(8):
    tr4(WOB + 8 * kk, kk, 1024, "v")
    if kk % 2 == 1: A("s_waitcnt lgkmcnt(0)")
for kk in range(8):
    vm.wait(("o", kk))
    for t in range(4):
        A("v_mfma_f32_32x32x16_bf16 %s, %s, %s, %s" % (vr(32 + 16 * t, 16), vr(WOB + 8 * kk + 4 * (t >> 1), 4), vr(OB + 8 * kk + 4 * (t & 1), 4), vr(32 + 16 * t, 16)))
A("s_barrier")
RS = 272
A("v_and_b32 v12, 31, v0")
A("v_mul_u32_u24 v12, %d, v12" % RS)
A("v_lshrrev_b32 v13, 5, v0")
A("v_lshl_add_u32 v12, v13, 4, v12")
A("s_mul_i32 %s, %s, %d" % (sT[5], sW, 64 * RS))
A("v_add_u32 v12, %s, v12" % sT[5])
for t in range(4):
    dh, sh = t >> 1, t & 1
    for m in range(4):
        A("ds_write_b128 v12, %s offset:%d" % (vr(32 + 16 * t + 4 * m, 4), sh * 32 * RS + dh * 128 + m * 32))
A("v_mul_u32_u24 v13, %d, v8" % RS)
A("v_lshl_add_u32 v13, v9, 5, v13")
A("s_mul_i32 %s, %s, %d" % (sT[5], sW, 8 * RS))
A("v_add_u32 v13, %s, v13" % sT[5])
unpack(32, RX, 8)
A("v_lshlrev_b32 v%d, 16, v%d" % (RB2, RB2))
A("v_lshlrev_b32 v%d, 16, v%d" % (RB2 + 2, RB2 + 2))
A("s_waitcnt lgkmcnt(0)")
A("s_barrier")
for p in range(2):
    for wv in range(4):
        for h in range(2):
            A("ds_read_b128 %s, v13 offset:%d" % (vr(96 + (p * 4 + wv) * 8 + 4 * h, 4), wv * 64 * RS + p * 32 * RS + 16 * h))
for p in range(2):
    for i in range(4):
        A("v_pk_add_f32 %s, %s, %s op_sel_hi:[1,0]" % (P(32 + 8 * p + 2 * i), P(32 + 8 * p + 2 * i), P(RB2 + 2 * p)))
for p in range(2):
    for wv in range(4):
        A("s_waitcnt lgkmcnt(%d)" % (14 - 2 * (p * 4 + wv)))
        for i in range(4):
            A("v_pk_add_f32 %s, %s, %s" % (P(32 + 8 * p + 2 * i), P(32 + 8 * p + 2 * i), P(96 + (p * 4 + wv) * 8 + 2 * i)))
    pack(48 + 4 * p, 32 + 8 * p, 4)
    A("buffer_store_dwordx4 %s, v10, %s, %s offen" % (vr(48 + 4 * p, 4), sOUT, sT[0] if p == 0 else sT[2]))
A.label("L_fin")
if opt["stamp"]:
    A("s_waitcnt vmcnt(0)")
    A("s_memtime s[68:69]")
    A("s_memrealtime s[76:77]")
    A("s_waitcnt lgkmcnt(0)")
    A("s_lshl_b32 %s, s2, 2" % sT[5])
    A("s_add_u32 %s, %s, %s" % (sT[5], sT[5], sW))
    A("s_lshl_b32 %s, %s, 6" % (sT[5], sT[5]))
    A("s_add_u32 %s, %s, %d" % (sT[5], sT[5], STAMP))
    regs = [78, 76] + [80 + 2 * i for i in range(11)] + [68]
    for j, r in enumerate(regs):
        A("v_mov_b32 v%d, s%d" % (32 + j, r))
    A("s_lshl_b32 %s, %s, 1" % (sFIN, sFIN))
    A("s_or_b32 %s, %s, %s" % (sFIN, sFIN, sG1))
    A("v_mov_b32 v46, %s" % sFIN)
    A("v_mov_b32 v47, 0x1234")
    A("v_mov_b32 v12, 0")
    A("s_mov_b64 exec, 1")
    for q in range(4):
        A("buffer_store_dwordx4 %s, v12, %s, %s offen offset:%d" % (vr(32 + 4 * q, 4), sWS, sT[5], 16 * q))
A.label("L_end")
A("s_endpgm")

body, added = pad(A.text())
sys.stderr.write("hazard nops added: %d, stamps %d\n" % (added, nstamp[0]))
hdr = "; Fused hedgehog linear attention + token-mixing MLP, persistent single launch (generated by dev/gen.py)\n"
print(single(body + "\n", 256, 256, LDS_TOTAL, 512, 256, header=hdr))
```

```python
import sys, re
from asmlib import *
main = open(sys.argv[1]).read()
kind = sys.argv[2]
K = NAME + "_kernel"
A = Asm()
if kind.startswith("lat"):
    _, koff, base, n, stride = kind.split(":")
    A("s_cmp_ge_u32 s2, 1")
    A("s_cbranch_scc1 P_end")
    A("s_load_dwordx2 s[8:9], s[0:1], %s" % koff)
    A("s_mov_b32 s10, 0x10000000" if koff == "88" else "s_mov_b32 s10, 1835008")
    A("s_mov_b32 s11, 0x20000")
    A("v_mov_b32 v1, %d" % int(base, 0))
    A("s_mov_b32 s12, %s" % n)
    A("s_waitcnt lgkmcnt(0)")
    A.label("P_loop")
    A("buffer_load_dword v2, v1, s[8:11], 0 offen")
    A("s_waitcnt vmcnt(0)")
    A("v_add_u32 v1, %s, v1" % stride)
    A("s_sub_u32 s12, s12, 1")
    A("s_cmp_lg_u32 s12, 0")
    A("s_cbranch_scc1 P_loop")
    grid, block = 1, 64
elif kind.startswith("bw"):
    _, base, n, fl = kind.split(":")
    A("s_cmp_ge_u32 s2, 256")
    A("s_cbranch_scc1 P_end")
    A("s_load_dwordx2 s[8:9], s[0:1], 88")
    A("s_mov_b32 s10, 0x10000000")
    A("s_mov_b32 s11, 0x20000")
    A("v_lshlrev_b32 v1, 4, v0")
    A("s_lshl_b32 s13, s2, 12")
    A("s_add_u32 s13, s13, %d" % int(base, 0))
    A("s_mov_b32 s12, %d" % (int(n) // 8))
    A("s_waitcnt lgkmcnt(0)")
    A.label("P_loop")
    for i in range(8):
        A("buffer_load_dwordx4 v[%d:%d], v1, s[8:11], s13 offen %s" % (4 + 4 * i, 7 + 4 * i, fl))
        A("s_add_u32 s13, s13, 0x100000")
    A("s_sub_u32 s12, s12, 1")
    A("s_cmp_lg_u32 s12, 0")
    A("s_cbranch_scc1 P_loop")
    A("s_waitcnt vmcnt(0)")
    grid, block = 256, 256
else:
    grid, block = 1, 64
A.label("P_end")
A("s_endpgm")
m = re.search(r"; @launch (grid=\S+ block=\S+ lds=\d+)", main)
hdr = "; @launch kernel=probe_kernel grid=(%d,1,1) block=(%d,1,1) lds=0\n; @launch kernel=%s %s\n" % (grid, block, K, m.group(1))
main = main.replace(m.group(0) + "\n", "")
body = ".globl probe_kernel\n.p2align 8\n.type probe_kernel,@function\nprobe_kernel:\n" + A.text()
main = main.replace('.section .rodata,"a"\n', body + '.section .rodata,"a"\n' + kd("probe_kernel", 64, 64, 32))
print(hdr + main)
```
